```python
import torch

def _softmax(x, axis=-1):
    return torch.softmax(x, dim=axis)
def _gelu(x):
    return torch.nn.functional.gelu(x, approximate="tanh")
def _silu(x):
    return torch.nn.functional.silu(x)
def _sigmoid(x):
    return torch.sigmoid(x)
def _layernorm(x, axis=-1, eps=1e-5):
    m = x.mean(dim=axis, keepdim=True)
    v = x.var(dim=axis, keepdim=True, unbiased=False)
    return (x - m) / torch.sqrt(v + eps)
def _scatter_add(tgt, idx, src, axis=0):
    return tgt.clone().index_add_(axis, idx, src)
def _segment_sum(src, seg, n):
    out = torch.zeros((n,) + src.shape[1:], dtype=src.dtype)
    return out.index_add_(0, seg, src)
def _pad(x, pw):
    flat = tuple(v for pair in reversed(pw) for v in pair)
    return torch.nn.functional.pad(x, flat)

kernel_name = 'sequential_preLN__sliding_block_cached__dense_activation_relu__decode'

def setup_inputs():

    _w = (lambda a: (lambda t: t.to(torch.bfloat16) if t.is_floating_point() else t)(torch.as_tensor(a)))
    def _A_setup():
        B, Sq, D = 8, 1, 576
        Hq, Hkv, Sk, Dh = 32, 16, 8192, 128
        assert Hq % Hkv == 0, (Hq, Hkv)
        return {
            "x": _w((lambda *s: torch.randn(*s, dtype=torch.bfloat16) * 0.05)(B, Sq, D)),
            "k_cache": _w((lambda *s: torch.randn(*s, dtype=torch.bfloat16) * 3.2)(B, Hkv, Sk, Dh)),
            "v_cache": _w((lambda *s: torch.randn(*s, dtype=torch.bfloat16) * 0.4)(B, Hkv, Sk, Dh)),
            "wq": _w((lambda *s: torch.randn(*s, dtype=torch.bfloat16) * 3.2)(D, Hq * Dh) * (D ** -0.5)),
            "wo": _w((lambda *s: torch.randn(*s, dtype=torch.bfloat16) * 0.4)(Hq * Dh, D) * ((Hq * Dh) ** -0.5)),
        }
    _A_in = _A_setup()

    def _B_setup():
        B, S, D, Dff = 8, 1, 576, 4608
        return {
            "x": _w((lambda *s: torch.randn(*s, dtype=torch.bfloat16) * 0.05)(B, S, D)),
            "w1": _w((lambda *s: torch.randn(*s, dtype=torch.bfloat16) * 0.05)(D, Dff)),
            "w2": _w((lambda *s: torch.randn(*s, dtype=torch.bfloat16) * 0.05)(Dff, D)),
        }
    _B_in = _B_setup()

    return {
        "A_x": _A_in["x"],
        "A_k_cache": _A_in["k_cache"],
        "A_v_cache": _A_in["v_cache"],
        "A_wq": _A_in["wq"],
        "A_wo": _A_in["wo"],
        "B_x": _B_in["x"],
        "B_w1": _B_in["w1"],
        "B_w2": _B_in["w2"],
    }

def reference(A_x, A_k_cache, A_v_cache, A_wq, A_wo, B_x, B_w1, B_w2):
    def _A_ref(x, k_cache, v_cache, wq, wo):
        B, Sq, D = x.shape
        Hq, Dh = 32, 128
        Hkv, Sk = k_cache.shape[1], k_cache.shape[2]
        W = min(4096, max(256, Sk // 4))
        rep = Hq // Hkv
        q = (lambda x, *d: x.permute(*d))((x @ wq).reshape(B, Sq, Hq, Dh), 0, 2, 1, 3)
        k = (lambda x, n, axis: torch.repeat_interleave(x, n, dim=axis))(k_cache[:, :, Sk - W:, :], rep, axis=1)
        v = (lambda x, n, axis: torch.repeat_interleave(x, n, dim=axis))(v_cache[:, :, Sk - W:, :], rep, axis=1)
        scores = torch.einsum("bhqd,bhkd->bhqk", q, k) * (Dh ** -0.5)
        p = _softmax(scores, axis=-1)
        o = torch.einsum("bhqk,bhkd->bhqd", p, v)
        return (lambda x, *d: x.permute(*d))(o, 0, 2, 1, 3).reshape(B, Sq, Hq * Dh) @ wo

    def _B_ref(x, w1, w2):
        h = torch.einsum("bsd,df->bsf", x, w1)
        zero = torch.zeros_like(h)
        h = torch.maximum(h, zero)
        return torch.einsum("bsf,fd->bsd", h, w2)

    x = A_x
    h = x + _A_ref(_layernorm(x, axis=-1), A_k_cache, A_v_cache, A_wq, A_wo)
    h2 = h + _B_ref(_layernorm(h, axis=-1), B_w1, B_w2)
    return h2
```

```python
import sys
KN = "sequential_preLN__sliding_block_cached__dense_activation_relu__decode"

WS_EPOCH = 0x0
WS_QB    = 0x10000
WS_OREC  = 0x40000
WS_ML    = 0x80000
WS_PB    = 0x90000
WS_HB    = 0xE0000
WS_QP    = 0x100000
WS_STAMP = 0x20000000
XSTR = 1168
L_XN = 0
L_WQ = 9344
L_OB = L_WQ
L_MLW = L_WQ + 16384
L_QL = L_WQ + 18432
L_FLAG = L_QL + 512
L_OL = L_QL + 1024
OSTR = 528
L_H1 = L_OL + 8 * OSTR
H1STR = 80
L_FR = L_H1 + 1024
L_WO = 36864
L_W1 = L_WO + 32768
L_W2 = L_W1 + 36864
LDS_TOTAL = L_W2 + 36864

LOG2E = 0x3fb8aa3b
SCALE = 0x3db504f3
INV576 = 0x3ae38e39
EPS = 0x3727c5ac

class G:
    def __init__(self, stamps=False, opts=None):
        self.L = []
        self.stamps = stamps
        self.nst = 0
        self.opts = opts or {}
        self.lbl = 0
    def A(self, s): self.L.append("    " + s)
    def lab(self, s): self.L.append(s + ":")
    def newlab(self, p="L"):
        self.lbl += 1
        return f"{p}_{self.lbl}"
    def nop(self, n):
        while n > 0:
            k = min(n, 16)
            self.A(f"s_nop {k-1}")
            n -= k
    def stamp(self, i):
        if self.stamps:
            self.A(f"s_memrealtime s[{80+2*i}:{81+2*i}]")
            self.A("s_waitcnt lgkmcnt(0)")

sG, sW = 2, 3
sEP, sT = 26, 27
SX, SK, SV, SWQ, SWO, SW1, SW2, SOUT, SWS = 28, 32, 36, 40, 44, 48, 52, 56, 60
sHKV, sB, sSP, sBASE = 64, 65, 66, 67
sG0 = 68
sREC, sTMP, sCNT, sTMP2 = 72, 73, 74, 75
sC0 = 76
sC2 = 78
sHI = 96
sMK = 97
sL2E = 98
sT3, sT4, sT5 = 99, 100, 101
def srd(b): return f"s[{b}:{b+3}]"
vL, vM, vKG, vKO, vVO = 0, 1, 2, 3, 4
vT0, vT1, vT2 = 5, 6, 7
vS, vQ, vVP, vK, vACC = 8, 24, 40, 56, 120
def vr(a, n): return f"v[{a}:{a+n-1}]"

POLL_MAX = 100000

def emit_poll_end(g, lab, chk, sleep=0):
    done = g.newlab("Lpd")
    g.A(f"v_and_b32 v{chk}, 0xfff, v{chk}")
    g.A(f"v_cmp_ne_u32 vcc, 0, v{chk}")
    g.A(f"s_cbranch_vccz {done}")
    g.A(f"s_cmp_eq_u32 s{sCNT}, 0")
    g.A(f"s_cbranch_scc1 {done}")
    g.A(f"s_sub_u32 s{sCNT}, s{sCNT}, 1")
    if sleep:
        g.A(f"s_sleep {sleep}")
    g.A(f"s_branch {lab}")
    g.lab(done)

def emit_chk(g, dst, words, tmp):
    ws = list(words)
    first = True
    while ws:
        if len(ws) >= 2:
            a, b = ws.pop(0), ws.pop(0)
            d = dst if first else tmp
            g.A(f"v_bitop3_b32 v{d}, v{a}, v{b}, s{sT} bitop3:0x7e")
        else:
            a = ws.pop(0)
            d = dst if first else tmp
            g.A(f"v_xor_b32 v{d}, s{sT}, v{a}")
        if not first:
            g.A(f"v_or_b32 v{dst}, v{dst}, v{tmp}")
        first = False

def emit_bf16r(g, d, s):
    g.A(f"v_cvt_pk_bf16_f32 v{d}, v{s}, v{s}")
    g.A(f"v_and_b32 v{d}, s{sHI}, v{d}")

def emit_ln(g, e, t, ldsbase):
    d = t
    s1, s2 = t + 10, t + 11
    x, y = t + 12, t + 13
    g.A(f"v_readfirstlane_b32 s{sT3}, v{e}")
    g.nop(2)
    for i in range(9):
        g.A(f"v_subrev_f32 v{d+i}, s{sT3}, v{e+i}")
    g.A(f"v_add_f32 v{s1}, v{d}, v{d+1}")
    g.A(f"v_mul_f32 v{s2}, v{d}, v{d}")
    for i in range(1, 9):
        if i >= 2:
            g.A(f"v_add_f32 v{s1}, v{s1}, v{d+i}")
        g.A(f"v_fmac_f32 v{s2}, v{d+i}, v{d+i}")
    g.nop(2)
    g.A(f"v_permlane32_swap_b32 v{s1}, v{s2}")
    g.nop(1)
    g.A(f"v_add_f32 v{x}, v{s1}, v{s2}")
    g.A(f"v_mov_b32 v{y}, v{x}")
    g.nop(2)
    g.A(f"v_permlane16_swap_b32 v{x}, v{y}")
    g.nop(1)
    g.A(f"v_add_f32 v{x}, v{x}, v{y}")
    for r in (8, 4, 2, 1):
        g.nop(2)
        g.A(f"v_add_f32_dpp v{x}, v{x}, v{x} row_ror:{r} row_mask:0xf bank_mask:0xf")
    g.nop(1)
    g.A(f"v_readlane_b32 s{sT4}, v{x}, 0")
    g.A(f"v_readlane_b32 s{sT5}, v{x}, 32")
    g.A(f"v_mov_b32 v{y}, 0x{INV576:x}")
    g.nop(1)
    g.A(f"v_mul_f32 v{s1}, s{sT4}, v{y}")
    g.A(f"v_mul_f32 v{s2}, s{sT5}, v{y}")
    g.A(f"v_add_f32 v{x}, s{sT3}, v{s1}")
    g.A(f"v_fma_f32 v{s2}, -v{s1}, v{s1}, v{s2}")
    g.A(f"v_max_f32 v{s2}, 0, v{s2}")
    g.A(f"v_cvt_pk_bf16_f32 v{y}, v{x}, v{s2}")
    g.A(f"v_lshlrev_b32 v{x}, 16, v{y}")
    g.A(f"v_and_b32 v{s2}, s{sHI}, v{y}")
    g.A(f"v_add_f32 v{s2}, 0x{EPS:x}, v{s2}")
    emit_bf16r(g, s2, s2)
    g.A(f"v_sqrt_f32 v{s2}, v{s2}")
    g.nop(1)
    emit_bf16r(g, s2, s2)
    g.A(f"v_rcp_f32 v{s2}, v{s2}")
    for i in range(9):
        g.A(f"v_sub_f32 v{d+i}, v{e+i}, v{x}")
    for i in range(0, 9, 2):
        j = i + 1 if i + 1 < 9 else i
        g.A(f"v_cvt_pk_bf16_f32 v{e+i}, v{d+i}, v{d+j}")
    for i in range(0, 9, 2):
        g.A(f"v_lshlrev_b32 v{d+i}, 16, v{e+i}")
        if i + 1 < 9:
            g.A(f"v_and_b32 v{d+i+1}, s{sHI}, v{e+i}")
    for i in range(9):
        g.A(f"v_mul_f32 v{d+i}, v{d+i}, v{s2}")
    g.A(f"v_cvt_pk_bf16_f32 v{e}, v{d}, v{d+1}")
    g.A(f"v_cvt_pk_bf16_f32 v{e+1}, v{d+2}, v{d+3}")
    g.A(f"v_cvt_pk_bf16_f32 v{e+2}, v{d+4}, v{d+5}")
    g.A(f"v_cvt_pk_bf16_f32 v{e+3}, v{d+6}, v{d+7}")
    g.A(f"v_cvt_pk_bf16_f32 v{e+4}, v{d+8}, v{d+8}")
    g.A(f"s_mul_i32 s{sTMP}, s{sW}, {XSTR}")
    g.A(f"v_lshl_add_u32 v{s1}, v{vL}, 3, s{sTMP}")
    g.A(f"v_lshl_add_u32 v{y}, v{vL}, 1, s{sTMP}")
    g.A(f"ds_write_b64 v{s1}, {vr(e,2)} offset:{ldsbase}")
    g.A(f"ds_write_b64 v{s1}, {vr(e+2,2)} offset:{ldsbase+512}")
    g.A(f"ds_write_b16 v{y}, v{e+4} offset:{ldsbase+1024}")

def emit_red4(g, r, rors):
    g.nop(2)
    g.A(f"v_permlane32_swap_b32 v{r}, v{r+1}")
    g.A(f"v_permlane32_swap_b32 v{r+2}, v{r+3}")
    g.nop(1)
    g.A(f"v_add_f32 v{r}, v{r}, v{r+1}")
    g.A(f"v_add_f32 v{r+2}, v{r+2}, v{r+3}")
    g.nop(2)
    g.A(f"v_permlane16_swap_b32 v{r}, v{r+2}")
    g.nop(1)
    g.A(f"v_add_f32 v{r}, v{r}, v{r+2}")
    for k in rors:
        g.nop(2)
        g.A(f"v_add_f32_dpp v{r}, v{r}, v{r} row_ror:{k} row_mask:0xf bank_mask:0xf")

def emit_rowred(g, op, x, t):
    g.A(f"v_mov_b32 v{t}, v{x}")
    g.nop(2)
    g.A(f"v_permlane32_swap_b32 v{x}, v{t}")
    g.nop(1)
    g.A(f"{op} v{x}, v{x}, v{t}")
    g.A(f"v_mov_b32 v{t}, v{x}")
    g.nop(2)
    g.A(f"v_permlane16_swap_b32 v{x}, v{t}")
    g.nop(1)
    g.A(f"{op} v{x}, v{x}, v{t}")

def kload(g, G_, s):
    r = vK + 16 * G_ + 4 * s
    g.A(f"buffer_load_dwordx4 {vr(r,4)}, v{vKO}, {srd(SK)}, s{sG0+G_} offen offset:{64*s} nt")
def vreg(G_, t):
    return (vVP if G_ == 0 else vK + 16 * (G_ - 1)) + 4 * t
def vload(g, G_, t):
    g.A(f"buffer_load_dwordx4 {vr(vreg(G_,t),4)}, v{vVO}, {srd(SV)}, s{sG0+G_} offen offset:{256*t} nt")

def emit_weight_dma(g):
    lab1 = g.newlab("Lnos2w")
    g.A(f"s_cmp_lt_u32 s{sG}, 112")
    g.A(f"s_cbranch_scc1 {lab1}")
    g.A(f"s_sub_u32 s{sTMP}, s{sG}, 112")
    g.A(f"s_and_b32 s{sTMP2}, s{sTMP}, 15")
    g.A(f"s_lshr_b32 s{sTMP}, s{sTMP}, 4")
    g.A(f"s_mul_i32 s{sTMP2}, s{sTMP2}, {256*1152}")
    g.A(f"s_lshl_b32 s{sTMP}, s{sTMP}, 7")
    g.A(f"s_add_u32 s{sTMP}, s{sTMP}, s{sTMP2}")
    g.A(f"s_mul_i32 s{sTMP2}, s{sW}, {8*1152}")
    g.A(f"s_add_u32 s{sTMP}, s{sTMP}, s{sTMP2}")
    g.A(f"v_lshrrev_b32 v{vT0}, 3, v{vL}")
    g.A(f"v_mul_u32_u24 v{vT0}, 1152, v{vT0}")
    g.A(f"v_and_b32 v{vT1}, 7, v{vL}")
    g.A(f"v_lshl_add_u32 v{vT0}, v{vT1}, 4, v{vT0}")
    g.A(f"s_lshl_b32 s{sTMP2}, s{sW}, 10")
    g.A(f"s_add_u32 m0, s{sTMP2}, {L_WO}")
    g.nop(1)
    g.A(f"buffer_load_dwordx4 v{vT0}, {srd(SWO)}, s{sTMP} offen nt lds")
    g.A(f"s_add_u32 m0, s{sTMP2}, {L_WO+16384}")
    g.A(f"s_add_u32 s{sTMP}, s{sTMP}, {128*1152}")
    g.A(f"buffer_load_dwordx4 v{vT0}, {srd(SWO)}, s{sTMP} offen nt lds")
    g.lab(lab1)

def emit_ffn_dma(g):
    lab2 = g.newlab("Lnoffnw")
    g.A(f"s_cmp_ge_u32 s{sG}, 144")
    g.A(f"s_cbranch_scc1 {lab2}")
    g.A(f"v_lshrrev_b32 v{vT0}, 2, v{vL}")
    g.A(f"v_mul_u32_u24 v{vT0}, 9216, v{vT0}")
    g.A(f"v_and_b32 v{vT1}, 3, v{vL}")
    g.A(f"v_lshl_add_u32 v{vT0}, v{vT1}, 4, v{vT0}")
    g.A(f"v_lshlrev_b32 v{vT1}, 4, v{vL}")
    g.A(f"s_lshl_b32 s{sTMP}, s{sG}, 6")
    g.A(f"s_mul_i32 s{sTMP2}, s{sW}, {16*9216}")
    g.A(f"s_add_u32 s{sTMP}, s{sTMP}, s{sTMP2}")
    g.A(f"s_mul_i32 s{sC0}, s{sG}, 36864")
    g.A(f"s_lshl_b32 s{sTMP2}, s{sW}, 10")
    g.A(f"s_add_u32 s{sC0}, s{sC0}, s{sTMP2}")
    for j in range(3):
        if j == 2:
            g.A(f"s_cmp_ge_u32 s{sW}, 4")
            g.A(f"s_cbranch_scc1 {lab2}")
        g.A(f"s_add_u32 m0, s{sTMP2}, {L_W1 + 16384*j}")
        g.nop(1)
        g.A(f"buffer_load_dwordx4 v{vT0}, {srd(SW1)}, s{sTMP} offen nt lds")
        g.A(f"s_add_u32 m0, s{sTMP2}, {L_W2 + 16384*j}")
        g.A(f"s_add_u32 s{sTMP}, s{sTMP}, {256*9216}")
        g.A(f"buffer_load_dwordx4 v{vT1}, {srd(SW2)}, s{sC0} offen nt lds")
        g.A(f"s_add_u32 s{sC0}, s{sC0}, 16384")
    g.lab(lab2)

def gen(fname, stamps=False, opts=None):
    g = G(stamps, opts)
    o = g.opts
    A = g.A
    g.L.append(f"; @launch grid=(256,1,1) block=(1024,1,1) lds={LDS_TOTAL}")
    g.L.append('.amdgcn_target "amdgcn-amd-amdhsa--gfx950"')
    g.L.append(".text")
    g.L.append(f".globl {KN}_kernel")
    g.L.append(".p2align 8")
    g.L.append(f".type {KN}_kernel,@function")
    g.lab(f"{KN}_kernel")
    A(f"s_cmp_ge_u32 s{sG}, 256")
    A("s_cbranch_scc1 L_end")
    A("s_load_dwordx2 s[24:25], s[0:1], 80")
    A("s_load_dwordx16 s[4:19], s[0:1], 0")
    A("s_load_dwordx4 s[20:23], s[0:1], 64")
    if stamps:
        A("s_memrealtime s[80:81]")
        for i in range(1, 8):
            A(f"s_mov_b64 s[{80+2*i}:{81+2*i}], 0")
    A("v_lshrrev_b32 v1, 6, v0")
    A(f"v_and_b32 v{vL}, 63, v0")
    A(f"v_readfirstlane_b32 s{sW}, v1")
    A(f"v_and_b32 v{vM}, 15, v{vL}")
    A(f"v_lshrrev_b32 v{vKG}, 4, v{vL}")
    A(f"v_lshlrev_b32 v{vKO}, 8, v{vM}")
    A(f"v_lshl_add_u32 v{vKO}, v{vKG}, 4, v{vKO}")
    A(f"v_lshlrev_b32 v{vVO}, 10, v{vKG}")
    A(f"v_lshl_add_u32 v{vVO}, v{vM}, 4, v{vVO}")
    A(f"s_and_b32 s{sHKV}, s{sG}, 7")
    A(f"s_lshr_b32 s{sTMP}, s{sG}, 3")
    A(f"s_lshr_b32 s{sTMP2}, s{sTMP}, 4")
    A(f"s_lshl_b32 s{sHKV}, s{sHKV}, 1")
    A(f"s_add_u32 s{sHKV}, s{sHKV}, s{sTMP2}")
    A(f"s_and_b32 s{sREC}, s{sTMP}, 15")
    A(f"s_lshr_b32 s{sB}, s{sREC}, 1")
    A(f"s_and_b32 s{sSP}, s{sTMP}, 1")
    A(f"s_lshl_b32 s{sTMP2}, s{sHKV}, 4")
    A(f"s_add_u32 s{sREC}, s{sREC}, s{sTMP2}")
    A(f"s_lshl_b32 s{sBASE}, s{sB}, 4")
    A(f"s_add_u32 s{sBASE}, s{sBASE}, s{sHKV}")
    A(f"s_lshl_b32 s{sBASE}, s{sBASE}, 21")
    A(f"s_add_u32 s{sBASE}, s{sBASE}, 0x180000")
    A(f"s_lshl_b32 s{sTMP2}, s{sSP}, 18")
    A(f"s_add_u32 s{sBASE}, s{sBASE}, s{sTMP2}")
    A(f"s_lshl_b32 s{sTMP2}, s{sW}, 14")
    A(f"s_add_u32 s{sG0}, s{sBASE}, s{sTMP2}")
    for i in range(1, 4):
        A(f"s_add_u32 s{sG0+i}, s{sG0}, {4096*i}")
    A(f"s_mov_b32 s{sHI}, 0xffff0000")
    A(f"s_mov_b32 s{sMK}, 0xfffff000")
    A(f"s_mov_b32 s{sL2E}, 0x{LOG2E:x}")
    A(f"s_mov_b32 s{sCNT}, {POLL_MAX}")
    A("s_waitcnt lgkmcnt(0)")
    A(f"s_load_dword s{sEP}, s[24:25], {WS_EPOCH}")
    def mk(b, p, n):
        A(f"s_mov_b32 s{b}, s{p}"); A(f"s_mov_b32 s{b+1}, s{p+1}"); A(f"s_mov_b32 s{b+2}, {n}"); A(f"s_mov_b32 s{b+3}, 0x00020000")
    mk(SX, 4, 9216); mk(SWQ, 10, 576*4096*2); mk(SK, 6, 0x10000000)
    E = vS
    R = vQ
    A(f"s_cmp_ge_u32 s{sW}, 8")
    A("s_cbranch_scc1 L_nox")
    A(f"s_mul_i32 s{sTMP}, s{sW}, 1152")
    A(f"v_lshlrev_b32 v{vT0}, 3, v{vL}")
    A(f"v_lshlrev_b32 v{vT1}, 1, v{vL}")
    A(f"buffer_load_dwordx2 {vr(R,2)}, v{vT0}, {srd(SX)}, s{sTMP} offen")
    A(f"buffer_load_dwordx2 {vr(R+2,2)}, v{vT0}, {srd(SX)}, s{sTMP} offen offset:512")
    A(f"buffer_load_ushort v{R+4}, v{vT1}, {srd(SX)}, s{sTMP} offen offset:1024")
    g.lab("L_nox")
    A(f"s_and_b32 s{sTMP}, s{sG}, 7")
    A(f"s_lshl_b32 s{sTMP}, s{sTMP}, 5")
    A(f"s_lshr_b32 s{sTMP2}, s{sG}, 3")
    A(f"s_add_u32 s{sC2}, s{sTMP}, s{sTMP2}")
    A(f"s_lshl_b32 s{sTMP}, s{sC2}, 5")
    A(f"s_lshl_b32 s{sTMP2}, s{sW}, 18")
    A(f"s_add_u32 s{sTMP}, s{sTMP}, s{sTMP2}")
    A(f"v_lshrrev_b32 v{vT0}, 1, v{vL}")
    A(f"v_lshlrev_b32 v{vT0}, 13, v{vT0}")
    A(f"v_and_b32 v{vT1}, 1, v{vL}")
    A(f"v_lshl_add_u32 v{vT0}, v{vT1}, 4, v{vT0}")
    A(f"s_lshl_b32 s{sTMP2}, s{sW}, 10")
    A(f"s_add_u32 m0, s{sTMP2}, {L_WQ}")
    g.nop(1)
    A(f"buffer_load_dwordx4 v{vT0}, {srd(SWQ)}, s{sTMP} offen lds")
    A(f"s_sub_u32 s{sC0}, s{sW}, 8")
    A(f"s_cmp_ge_u32 s{sC0}, 2")
    A("s_cbranch_scc1 L_nowq2")
    A(f"s_add_u32 m0, s{sTMP2}, {L_WQ + 8*1024}")
    A(f"s_add_u32 s{sTMP}, s{sTMP}, {8<<18}")
    A(f"buffer_load_dwordx4 v{vT0}, {srd(SWQ)}, s{sTMP} offen lds")
    g.lab("L_nowq2")
    for s in range(4): kload(g, 0, s)
    mk(SV, 8, 0x10000000); mk(SWO, 12, 4096*576*2); mk(SW1, 16, 576*4608*2); mk(SW2, 18, 4608*576*2)
    mk(SOUT, 20, 9216); mk(SWS, 24, 0x40000000)
    A(f"v_mov_b32 v{vT0}, 0")
    A(f"ds_write_b32 v{vT0}, v{vT0} offset:{L_FLAG}")
    A("s_waitcnt vmcnt(4)")
    A(f"s_cmp_ge_u32 s{sW}, 8")
    A("s_cbranch_scc1 L_noln")
    for i in range(4):
        A(f"v_lshlrev_b32 v{E+2*i}, 16, v{R+i}")
        A(f"v_and_b32 v{E+2*i+1}, s{sHI}, v{R+i}")
    A(f"v_lshlrev_b32 v{E+8}, 16, v{R+4}")
    g.nop(1)
    emit_ln(g, E, vVP, L_XN)
    g.lab("L_noln")
    A("s_waitcnt lgkmcnt(0)")
    A(f"s_add_u32 s{sT}, s{sEP}, 1")
    A(f"s_and_b32 s{sT}, s{sT}, 0xfff")
    A("s_barrier")
    g.stamp(1)
    A(f"s_cmp_lg_u32 s{sW}, 0")
    A("s_cbranch_scc1 L_stream")
    A("s_setprio 3")
    A(f"v_lshrrev_b32 v{vT0}, 2, v{vM}")
    A(f"v_lshl_add_u32 v{vT0}, v{vKG}, 3, v{vT0}")
    A(f"v_lshlrev_b32 v{vT0}, 5, v{vT0}")
    A(f"v_and_b32 v{vT1}, 3, v{vM}")
    A(f"v_lshl_add_u32 v{vT0}, v{vT1}, 3, v{vT0}")
    A(f"v_and_b32 v{vT1}, 7, v{vL}")
    A(f"v_mul_u32_u24 v{vT1}, {XSTR}, v{vT1}")
    A(f"v_lshl_add_u32 v{vT1}, v{vKG}, 4, v{vT1}")
    for blk in range(3):
        for j in range(6):
            s = blk * 6 + j
            a = vS + 8 * j
            A(f"ds_read_b64_tr_b16 {vr(a,2)}, v{vT0} offset:{L_WQ + s*1024}")
            A(f"ds_read_b64_tr_b16 {vr(a+2,2)}, v{vT0} offset:{L_WQ + s*1024 + 128}")
            A(f"ds_read_b128 {vr(a+4,4)}, v{vT1} offset:{L_XN + s*64}")
        A("s_waitcnt lgkmcnt(0)")
        for j in range(6):
            a = vS + 8 * j
            c = "0" if (blk == 0 and j == 0) else vr(vACC, 4)
            A(f"v_mfma_f32_16x16x32_bf16 {vr(vACC,4)}, {vr(a,4)}, {vr(a+4,4)}, {c}")
        g.nop(4)
    g.nop(8)
    A(f"v_cvt_pk_bf16_f32 v{vS}, v{vACC}, v{vACC+1}")
    A(f"v_cvt_pk_bf16_f32 v{vS+1}, v{vACC+2}, v{vACC+3}")
    A(f"v_mov_b32 v{vT2}, s{sT}")
    A(f"v_lshl_or_b32 v{vS+4}, v{vS}, 16, v{vT2}")
    A(f"v_and_or_b32 v{vS+5}, v{vS}, s{sHI}, v{vT2}")
    A(f"v_lshl_or_b32 v{vS+6}, v{vS+1}, 16, v{vT2}")
    A(f"v_and_or_b32 v{vS+7}, v{vS+1}, s{sHI}, v{vT2}")
    A(f"v_lshlrev_b32 v{vT0}, 14, v{vM}")
    A(f"v_lshl_add_u32 v{vT0}, v{vKG}, 4, v{vT0}")
    A(f"s_lshl_b32 s{sTMP}, s{sC2}, 6")
    A(f"s_add_u32 s{sTMP}, s{sTMP}, {WS_QB}")
    A(f"s_mov_b32 s{sC0}, 0x00ff00ff")
    A(f"s_mov_b32 s{sC0+1}, 0x00ff00ff")
    A(f"s_mov_b64 exec, s[{sC0}:{sC0+1}]")
    A(f"buffer_store_dwordx4 {vr(vS+4,4)}, v{vT0}, {srd(SWS)}, s{sTMP} offen sc1")
    A("s_mov_b64 exec, -1")
    g.stamp(2)
    A(f"s_lshl_b32 s{sTMP}, s{sB}, 14")
    A(f"s_lshl_b32 s{sTMP2}, s{sHKV}, 10")
    A(f"s_add_u32 s{sTMP}, s{sTMP}, s{sTMP2}")
    A(f"s_add_u32 s{sTMP}, s{sTMP}, {WS_QB}")
    A(f"v_lshlrev_b32 v{vT0}, 4, v{vL}")
    g.lab("L_pollq")
    A(f"buffer_load_dwordx4 {vr(vQ,4)}, v{vT0}, {srd(SWS)}, s{sTMP} offen sc1")
    A("s_waitcnt vmcnt(0)")
    emit_chk(g, vT1, [vQ, vQ+1, vQ+2, vQ+3], vT2)
    emit_poll_end(g, "L_pollq", vT1, sleep=2)
    A(f"s_mov_b32 s{sTMP}, 0x07060302")
    A(f"v_perm_b32 v{vQ+4}, v{vQ+1}, v{vQ}, s{sTMP}")
    A(f"v_perm_b32 v{vQ+5}, v{vQ+3}, v{vQ+2}, s{sTMP}")
    A(f"v_lshlrev_b32 v{vT0}, 3, v{vL}")
    A(f"v_mov_b32 v{vT1}, 0")
    A(f"v_mov_b32 v{vT2}, 1")
    A(f"ds_write_b64 v{vT0}, {vr(vQ+4,2)} offset:{L_QL}")
    A("s_waitcnt lgkmcnt(0)")
    A(f"ds_write_b32 v{vT1}, v{vT2} offset:{L_FLAG}")
    g.stamp(3)
    g.lab("L_stream")
    emit_weight_dma(g)
    if not o.get("late_ffn"):
        emit_ffn_dma(g)
    for G_ in range(1, 4):
        for s in range(4): kload(g, G_, s)
    for t in range(4): vload(g, 0, t)
    A("s_setprio 0")
    A(f"v_mov_b32 v{vT0}, 0")
    g.lab("L_waitq")
    A(f"ds_read_b32 v{vT1}, v{vT0} offset:{L_FLAG}")
    A("s_waitcnt lgkmcnt(0)")
    A(f"v_readfirstlane_b32 s{sTMP}, v{vT1}")
    A(f"s_cmp_lg_u32 s{sTMP}, 0")
    A("s_cbranch_scc1 L_qready")
    A("s_sleep 4")
    A("s_branch L_waitq")
    g.lab("L_qready")
    A(f"v_lshrrev_b32 v{vT0}, 3, v{vM}")
    A(f"v_lshlrev_b32 v{vT0}, 8, v{vT0}")
    A(f"v_lshl_add_u32 v{vT0}, v{vKG}, 4, v{vT0}")
    for s in range(4):
        A(f"ds_read_b128 {vr(vQ+4*s,4)}, v{vT0} offset:{L_QL + 64*s}")
    A("s_waitcnt lgkmcnt(0)")
    for G_ in range(4):
        A("s_waitcnt vmcnt(16)")
        for s in range(4):
            c = "0" if s == 0 else vr(vS+4*G_, 4)
            A(f"v_mfma_f32_16x16x32_bf16 {vr(vS+4*G_,4)}, {vr(vK+16*G_+4*s,4)}, {vr(vQ+4*s,4)}, {c}")
        if G_ < 3:
            for t in range(4): vload(g, G_ + 1, t)
    TM = vK + 48
    vMX, vLS, vNM, vTa, vTb, vTc = TM + 4, TM + 5, TM + 6, TM + 7, TM + 8, TM + 9
    A(f"v_and_b32 v{vT0}, 7, v{vM}")
    A(f"v_lshrrev_b32 v{vT1}, 1, v{vT0}")
    A(f"v_and_b32 v{vT0}, 1, v{vT0}")
    A(f"v_lshlrev_b32 v{vT0}, 4, v{vT0}")
    A(f"v_mov_b32 v{vT2}, 0xffff")
    A(f"v_lshlrev_b32 v{vT2}, v{vT0}, v{vT2}")
    g.nop(4)
    for r in range(4):
        A(f"v_cmp_eq_u32 vcc, {r}, v{vT1}")
        g.nop(2)
        A(f"v_cndmask_b32 v{TM+r}, 0, v{vT2}, vcc")
    A(f"v_max3_f32 v{vMX}, v{vS}, v{vS+1}, v{vS+2}")
    for i in range(3, 15, 2):
        A(f"v_max3_f32 v{vMX}, v{vMX}, v{vS+i}, v{vS+i+1}")
    A(f"v_max_f32 v{vMX}, v{vMX}, v{vS+15}")
    emit_rowred(g, "v_max_f32", vMX, vTa)
    emit_bf16r(g, vMX, vMX)
    A(f"v_mul_f32 v{vMX}, 0x{SCALE:x}, v{vMX}")
    emit_bf16r(g, vMX, vMX)
    A(f"v_mul_f32 v{vNM}, s{sL2E}, v{vMX}")
    A(f"v_mov_b32 v{vLS}, 0")
    A(f"s_mov_b32 s{sTMP}, 0x{SCALE:x}")
    for i in range(0, 16, 2):
        a, b = vS + i, vS + i + 1
        A(f"v_cvt_pk_bf16_f32 v{vTa}, v{a}, v{b}")
        A(f"v_lshlrev_b32 v{a}, 16, v{vTa}")
        A(f"v_and_b32 v{b}, s{sHI}, v{vTa}")
        A(f"v_mul_f32 v{a}, s{sTMP}, v{a}")
        A(f"v_mul_f32 v{b}, s{sTMP}, v{b}")
        A(f"v_cvt_pk_bf16_f32 v{vTa}, v{a}, v{b}")
        A(f"v_lshlrev_b32 v{a}, 16, v{vTa}")
        A(f"v_and_b32 v{b}, s{sHI}, v{vTa}")
        A(f"v_fma_f32 v{a}, v{a}, s{sL2E}, -v{vNM}")
        A(f"v_fma_f32 v{b}, v{b}, s{sL2E}, -v{vNM}")
        A(f"v_exp_f32 v{a}, v{a}")
        A(f"v_exp_f32 v{b}, v{b}")
        g.nop(1)
        A(f"v_add_f32 v{vLS}, v{vLS}, v{a}")
        A(f"v_cvt_pk_bf16_f32 v{a}, v{a}, v{a}")
        A(f"v_add_f32 v{vLS}, v{vLS}, v{b}")
        A(f"v_cvt_pk_bf16_f32 v{b}, v{b}, v{b}")
    emit_rowred(g, "v_add_f32", vLS, vTa)
    assert vMX % 2 == 0 and vLS == vMX + 1
    A(f"s_lshl_b32 s{sTMP}, s{sW}, 4")
    A(f"v_add_u32 v{vTa}, s{sTMP}, v{vL}")
    A("s_mov_b64 exec, 0x101")
    A(f"ds_write_b64 v{vTa}, {vr(vMX,2)} offset:{L_MLW}")
    A("s_mov_b64 exec, -1")
    for i in range(16):
        G_, t = i // 4, i % 4
        ao = vQ + 4 * (i % 4)
        for r in range(4):
            A(f"v_and_b32 v{ao+r}, v{vS+i}, v{TM+r}")
        A(f"s_waitcnt vmcnt({15-i})")
        g.nop(1)
        c = "0" if i == 0 else vr(vACC, 4)
        A(f"v_mfma_f32_16x16x32_bf16 {vr(vACC,4)}, {vr(ao,4)}, {vr(vreg(G_,t),4)}, {c}")
    A(f"s_lshl_b32 s{sTMP}, s{sW}, 10")
    A(f"v_lshl_add_u32 v{vTa}, v{vL}, 4, s{sTMP}")
    g.nop(7)
    A(f"ds_write_b128 v{vTa}, {vr(vACC,4)} offset:{L_OB}")
    A(f"v_lshrrev_b32 v{vT0}, 2, v{vL}")
    A(f"v_and_b32 v{vT1}, 3, v{vL}")
    A(f"s_lshl_b32 s{sTMP}, s{sW}, 6")
    A(f"v_lshl_add_u32 v{vT2}, v{vT1}, 4, s{sTMP}")
    A(f"v_lshl_add_u32 v{vT2}, v{vT0}, 10, v{vT2}")
    A(f"s_lshr_b32 s{sTMP2}, s{sW}, 3")
    A(f"s_lshl_b32 s{sTMP2}, s{sTMP2}, 3")
    A(f"v_lshl_add_u32 v{vT0}, v{vT0}, 4, s{sTMP2}")
    A("s_waitcnt lgkmcnt(0)")
    g.stamp(4)
    A("s_barrier")
    O = vS; MLr = vS + 4; vMa = vS + 6; vF = vS + 7; vTd = vS + 8
    A(f"ds_read_b64 {vr(MLr,2)}, v{vT0} offset:{L_MLW}")
    A(f"ds_read_b128 {vr(O,4)}, v{vT2} offset:{L_OB}")
    A(f"v_and_b32 v{vTd+1}, 1, v{vKG}")
    A(f"v_lshlrev_b32 v{vTd+1}, 3, v{vTd+1}")
    A(f"v_lshrrev_b32 v{vTd+2}, 1, v{vKG}")
    A(f"v_lshl_add_u32 v{vTd+1}, v{vTd+2}, 2, v{vTd+1}")
    A(f"v_lshl_add_u32 v{vTd+1}, v{vT1}, 4, v{vTd+1}")
    A(f"s_lshl_b32 s{sC0}, s{sREC}, 10")
    A(f"s_add_u32 s{sC0}, s{sC0}, s{sTMP}")
    A(f"s_add_u32 s{sC0}, s{sC0}, {WS_OREC}")
    A("s_waitcnt lgkmcnt(1)")
    A(f"v_max_f32_dpp v{vMa}, v{MLr}, v{MLr} row_ror:4 row_mask:0xf bank_mask:0xf")
    g.nop(2)
    A(f"v_max_f32_dpp v{vMa}, v{vMa}, v{vMa} row_ror:8 row_mask:0xf bank_mask:0xf")
    emit_rowred(g, "v_max_f32", vMa, vTd)
    A(f"v_sub_f32 v{vF}, v{MLr}, v{vMa}")
    A(f"v_mul_f32 v{vF}, s{sL2E}, v{vF}")
    A(f"v_exp_f32 v{vF}, v{vF}")
    A("s_waitcnt lgkmcnt(0)")
    for r in range(4):
        A(f"v_mul_f32 v{O+r}, v{O+r}, v{vF}")
    A(f"v_mul_f32 v{MLr+1}, v{MLr+1}, v{vF}")
    emit_red4(g, O, (4, 8))
    A(f"v_mov_b32 v{vTd}, s{sT}")
    A(f"v_and_or_b32 v{O}, v{O}, s{sMK}, v{vTd}")
    A(f"s_mov_b32 s{sC2}, 0x000f000f")
    A(f"s_mov_b32 s{sC2+1}, 0x000f000f")
    A(f"s_mov_b64 exec, s[{sC2}:{sC2+1}]")
    A(f"buffer_store_dword v{O}, v{vTd+1}, {srd(SWS)}, s{sC0} offen sc1")
    A("s_mov_b64 exec, -1")
    A(f"s_and_b32 s{sTMP}, s{sW}, 7")
    A(f"s_cmp_lg_u32 s{sTMP}, 0")
    A("s_cbranch_scc1 L_noml")
    Lr = MLr + 1
    A(f"v_add_f32_dpp v{Lr}, v{Lr}, v{Lr} row_ror:4 row_mask:0xf bank_mask:0xf")
    g.nop(2)
    A(f"v_add_f32_dpp v{Lr}, v{Lr}, v{Lr} row_ror:8 row_mask:0xf bank_mask:0xf")
    emit_rowred(g, "v_add_f32", Lr, vTd + 3)
    W = vS + 12
    A(f"v_or_b32 v{W}, v{vMa}, v{vTd}")
    A(f"v_and_or_b32 v{W+1}, v{Lr}, s{sMK}, v{vTd}")
    A(f"v_mov_b32 v{W+2}, v{vTd}")
    A(f"v_mov_b32 v{W+3}, v{vTd}")
    A(f"s_lshl_b32 s{sC0}, s{sREC}, 5")
    A(f"s_lshl_b32 s{sTMP}, s{sW}, 1")
    A(f"s_add_u32 s{sC0}, s{sC0}, s{sTMP}")
    A(f"s_add_u32 s{sC0}, s{sC0}, {WS_ML}")
    A(f"v_mov_b32 v{vTd+2}, 0")
    A("s_mov_b64 exec, 1")
    A(f"buffer_store_dwordx4 {vr(W,4)}, v{vTd+2}, {srd(SWS)}, s{sC0} offen sc1")
    A("s_mov_b64 exec, -1")
    g.lab("L_noml")
    if o.get("late_ffn"):
        emit_ffn_dma(g)
    vRO, vCB, vB8 = 124, 125, 126
    A(f"v_lshrrev_b32 v{vRO}, 2, v{vM}")
    A(f"v_lshl_add_u32 v{vRO}, v{vKG}, 3, v{vRO}")
    A(f"v_and_b32 v{vCB}, 3, v{vM}")
    A(f"v_lshlrev_b32 v{vCB}, 3, v{vCB}")
    A(f"v_and_b32 v{vB8}, 7, v{vL}")
    A(f"s_cmp_lt_u32 s{sG}, 112")
    A("s_cbranch_scc1 L_noS2")
    sH2, sNS = sHKV, sSP
    A(f"s_sub_u32 s{sTMP}, s{sG}, 112")
    A(f"s_and_b32 s{sH2}, s{sTMP}, 15")
    A(f"s_lshr_b32 s{sNS}, s{sTMP}, 4")
    WF = 56
    OF = 88
    A(f"s_cmp_ge_u32 s{sW}, 8")
    A("s_cbranch_scc1 L_S2_mf")
    P0, P1, M0r, M1r = 8, 12, 16, 20
    A(f"s_lshl_b32 s{sTMP}, s{sH2}, 4")
    A(f"s_lshl_b32 s{sTMP2}, s{sW}, 1")
    A(f"s_add_u32 s{sTMP}, s{sTMP}, s{sTMP2}")
    A(f"s_lshl_b32 s{sC0}, s{sTMP}, 10")
    A(f"s_add_u32 s{sC0}, s{sC0}, {WS_OREC}")
    A(f"s_lshl_b32 s{sC0+1}, s{sTMP}, 5")
    A(f"s_add_u32 s{sC0+1}, s{sC0+1}, {WS_ML}")
    A(f"v_lshlrev_b32 v{vT0}, 4, v{vL}")
    A(f"v_lshrrev_b32 v{vT1}, 5, v{vL}")
    A(f"v_lshlrev_b32 v{vT1}, 4, v{vT1}")
    A(f"s_mul_i32 s{sTMP}, s{sW}, {OSTR}")
    A(f"v_lshl_add_u32 v24, v{vT1}, 4, s{sTMP}")
    A(f"v_lshl_add_u32 v24, v{vM}, 4, v24")
    A(f"v_and_b32 v25, 1, v{vKG}")
    A(f"v_lshl_add_u32 v24, v25, 3, v24")
    g.lab("L_pollO")
    A(f"buffer_load_dwordx4 {vr(P0,4)}, v{vT0}, {srd(SWS)}, s{sC0} offen sc1")
    A(f"buffer_load_dwordx4 {vr(P1,4)}, v{vT0}, {srd(SWS)}, s{sC0} offen offset:1024 sc1")
    A(f"buffer_load_dwordx4 {vr(M0r,4)}, v{vT1}, {srd(SWS)}, s{sC0+1} offen sc1")
    A(f"buffer_load_dwordx4 {vr(M1r,4)}, v{vT1}, {srd(SWS)}, s{sC0+1} offen offset:32 sc1")
    A("s_waitcnt vmcnt(0)")
    emit_chk(g, 26, list(range(8, 24)), 27)
    emit_poll_end(g, "L_pollO", 26, sleep=o.get("sleepO", 1))
    g.stamp(5)
    for r in list(range(8, 16)) + [M0r, M0r+1, M1r, M1r+1]:
        A(f"v_and_b32 v{r}, s{sMK}, v{r}")
    A(f"v_max_f32 v26, v{M0r}, v{M1r}")
    A(f"v_sub_f32 v27, v{M0r}, v26")
    A(f"v_sub_f32 v28, v{M1r}, v26")
    A(f"v_mul_f32 v27, s{sL2E}, v27")
    A(f"v_mul_f32 v28, s{sL2E}, v28")
    A("v_exp_f32 v27, v27")
    A("v_exp_f32 v28, v28")
    g.nop(1)
    A(f"v_mul_f32 v26, v27, v{M0r+1}")
    A(f"v_fmac_f32 v26, v28, v{M1r+1}")
    A("v_rcp_f32 v26, v26")
    g.nop(1)
    A("v_mul_f32 v27, v27, v26")
    A("v_mul_f32 v28, v28, v26")
    for r in range(4):
        A(f"v_mul_f32 v{P0+r}, v{P0+r}, v27")
    for r in range(4):
        A(f"v_fmac_f32 v{P0+r}, v{P1+r}, v28")
    A(f"v_cvt_pk_bf16_f32 v{P1}, v{P0}, v{P0+1}")
    A(f"v_cvt_pk_bf16_f32 v{P1+1}, v{P0+2}, v{P0+3}")
    A(f"ds_write_b64 v24, {vr(P1,2)} offset:{L_OL}")
    A("s_waitcnt lgkmcnt(0)")
    A("s_barrier")
    A("s_branch L_S2_done")
    g.lab("L_S2_mf")
    A(f"s_cmp_ge_u32 s{sW}, 12")
    A("s_cbranch_scc1 L_S2_idle")
    A(f"s_sub_u32 s{sTMP}, s{sW}, 8")
    A(f"s_lshl_b32 s{sTMP2}, s{sTMP}, 5")
    A(f"v_lshl_add_u32 v{vT0}, v{vRO}, 7, v{vCB}")
    A(f"v_add_u32 v{vT0}, s{sTMP2}, v{vT0}")
    A(f"v_add_u32 v{vT0}, {L_WO}, v{vT0}")
    for s in range(8):
        A(f"ds_read_b64_tr_b16 {vr(WF+4*s,2)}, v{vT0} offset:{s*4096}")
        A(f"ds_read_b64_tr_b16 {vr(WF+4*s+2,2)}, v{vT0} offset:{s*4096 + 512}")
    A(f"v_mul_u32_u24 v{vT1}, {OSTR}, v{vB8}")
    A(f"v_lshl_add_u32 v{vT1}, v{vKG}, 4, v{vT1}")
    A(f"v_mul_u32_u24 v{vT2}, 2304, v{vM}")
    A(f"v_lshl_add_u32 v{vT2}, v{vKG}, 4, v{vT2}")
    A(f"s_mul_i32 s{sC0}, s{sH2}, {8*2304}")
    A(f"s_lshl_b32 s{sTMP2}, s{sNS}, 8")
    A(f"s_add_u32 s{sC0}, s{sC0}, s{sTMP2}")
    A(f"s_lshl_b32 s{sTMP2}, s{sTMP}, 6")
    A(f"s_add_u32 s{sC0}, s{sC0}, s{sTMP2}")
    A(f"s_add_u32 s{sC0}, s{sC0}, {WS_PB}")
    A(f"s_mov_b32 s{sC2}, 0x00ff00ff")
    A(f"s_mov_b32 s{sC2+1}, 0x00ff00ff")
    A(f"v_mov_b32 v8, s{sT}")
    A("s_waitcnt lgkmcnt(0)")
    A("s_barrier")
    for s in range(8):
        A(f"ds_read_b128 {vr(OF+4*s,4)}, v{vT1} offset:{L_OL + 64*s}")
    for s in range(8):
        A(f"s_waitcnt lgkmcnt({7-s})")
        c = "0" if s == 0 else vr(vACC, 4)
        A(f"v_mfma_f32_16x16x32_bf16 {vr(vACC,4)}, {vr(WF+4*s,4)}, {vr(OF+4*s,4)}, {c}")
    g.nop(8)
    for r in range(4):
        A(f"v_and_or_b32 v{12+r}, v{vACC+r}, s{sMK}, v8")
    A(f"s_mov_b64 exec, s[{sC2}:{sC2+1}]")
    A(f"buffer_store_dwordx4 {vr(12,4)}, v{vT2}, {srd(SWS)}, s{sC0} offen sc1")
    A("s_mov_b64 exec, -1")
    g.stamp(5)
    A("s_branch L_S2_done")
    g.lab("L_S2_idle")
    A("s_barrier")
    g.lab("L_S2_done")
    g.lab("L_noS2")
    A(f"s_cmp_ge_u32 s{sG}, 144")
    A("s_cbranch_scc1 L_noFFN")
    W2F = 104
    if o.get("late_ffn"):
        pass
    def w2pre():
        A(f"s_mul_i32 s{sTMP2}, s{sW}, 96")
        A(f"v_mul_u32_u24 v{vT0}, 1152, v{vRO}")
        A(f"v_add3_u32 v{vT0}, v{vT0}, v{vCB}, s{sTMP2}")
        A(f"v_add_u32 v{vT0}, {L_W2}, v{vT0}")
        for j in range(3):
            A(f"ds_read_b64_tr_b16 {vr(W2F+4*j,2)}, v{vT0} offset:{32*j}")
            A(f"ds_read_b64_tr_b16 {vr(W2F+4*j+2,2)}, v{vT0} offset:{32*j + 4*1152}")
    A(f"s_cmp_ge_u32 s{sW}, 8")
    A("s_cbranch_scc1 L_F_hi")
    if not o.get("late_ffn"):
        w2pre()
    A(f"s_mul_i32 s{sC0}, s{sW}, 2304")
    A(f"s_add_u32 s{sC0}, s{sC0}, {WS_HB}")
    A(f"v_lshlrev_b32 v{vT0}, 4, v{vL}")
    A(f"v_lshlrev_b32 v{vT1}, 2, v{vL}")
    g.lab("L_pollH")
    A(f"buffer_load_dwordx4 {vr(8,4)}, v{vT0}, {srd(SWS)}, s{sC0} offen sc1")
    A(f"buffer_load_dwordx4 {vr(12,4)}, v{vT0}, {srd(SWS)}, s{sC0} offen offset:1024 sc1")
    A(f"buffer_load_dword v16, v{vT1}, {srd(SWS)}, s{sC0} offen offset:2048 sc1")
    A("s_waitcnt vmcnt(0)")
    emit_chk(g, 26, list(range(8, 17)), 27)
    emit_poll_end(g, "L_pollH", 26, sleep=o.get("sleepH", 2))
    g.stamp(6)
    for r in range(8, 17):
        A(f"v_and_b32 v{r}, s{sHI}, v{r}")
    g.nop(1)
    emit_ln(g, 8, 40, L_XN)
    A("s_branch L_F_b1")
    g.lab("L_F_hi")
    A(f"s_cmp_ge_u32 s{sW}, 12")
    A("s_cbranch_scc1 L_F_hi2")
    if not o.get("late_ffn"):
        w2pre()
    A(f"s_cmp_ge_u32 s{sW}, 11")
    A("s_cbranch_scc1 L_F_b1")
    A(f"s_cmp_ge_u32 s{sG}, 96")
    A("s_cbranch_scc1 L_F_b1")
    A(f"s_mul_i32 s{sTMP}, s{sG}, 3")
    A(f"s_add_u32 s{sTMP}, s{sTMP}, s{sW}")
    A(f"s_sub_u32 s{sTMP}, s{sTMP}, 8")
    A(f"s_and_b32 s{sTMP2}, s{sTMP}, 7")
    A(f"s_lshr_b32 s{sTMP}, s{sTMP}, 3")
    A(f"s_mul_i32 s{sTMP2}, s{sTMP2}, 576")
    A(f"s_lshl_b32 s{sTMP}, s{sTMP}, 4")
    A(f"s_add_u32 s{sTMP}, s{sTMP}, s{sTMP2}")
    A(f"s_lshl_b32 s{sTMP2}, s{sTMP}, 1")
    A(f"s_lshl_b32 s{sC0}, s{sTMP}, 2")
    A(f"s_add_u32 s{sC0+1}, s{sC0}, {WS_HB}")
    A(f"s_add_u32 s{sC0}, s{sC0}, {WS_PB}")
    A(f"v_and_b32 v20, 3, v{vL}")
    A(f"v_and_b32 v21, 1, v{vKG}")
    A(f"v_lshlrev_b32 v21, 1, v21")
    A(f"v_lshrrev_b32 v22, 1, v{vKG}")
    A(f"v_add_u32 v21, v21, v22")
    A(f"v_lshl_add_u32 v21, v20, 2, v21")
    A(f"v_lshlrev_b32 v22, 1, v21")
    A(f"buffer_load_ushort v23, v22, {srd(SX)}, s{sTMP2} offen")
    A(f"v_lshlrev_b32 v21, 2, v21")
    A(f"v_lshrrev_b32 v{vT0}, 2, v{vL}")
    A(f"v_mul_u32_u24 v{vT0}, {8*2304}, v{vT0}")
    A(f"v_lshl_add_u32 v{vT0}, v20, 4, v{vT0}")
    g.lab("L_pollP")
    A(f"buffer_load_dwordx4 {vr(8,4)}, v{vT0}, {srd(SWS)}, s{sC0} offen sc1")
    A("s_waitcnt vmcnt(0)")
    emit_chk(g, 26, [8, 9, 10, 11], 27)
    emit_poll_end(g, "L_pollP", 26, sleep=o.get("sleepP", 1))
    g.stamp(5)
    for r in range(8, 12):
        A(f"v_and_b32 v{r}, s{sMK}, v{r}")
    emit_red4(g, 8, (4, 8))
    emit_bf16r(g, 8, 8)
    A("v_lshlrev_b32 v23, 16, v23")
    A("v_add_f32 v8, v8, v23")
    A("v_cvt_pk_bf16_f32 v8, v8, v8")
    A(f"v_mov_b32 v9, s{sT}")
    A(f"v_and_or_b32 v8, v8, s{sHI}, v9")
    A(f"s_mov_b32 s{sC2}, 0x000f000f")
    A(f"s_mov_b32 s{sC2+1}, 0x000f000f")
    A(f"s_mov_b64 exec, s[{sC2}:{sC2+1}]")
    A(f"buffer_store_dword v8, v21, {srd(SWS)}, s{sC0+1} offen sc1")
    A("s_mov_b64 exec, -1")
    g.stamp(6)
    A("s_branch L_F_b1")
    g.lab("L_F_hi2")
    A(f"s_cmp_ge_u32 s{sW}, 14")
    A("s_cbranch_scc1 L_F_b1")
    W1F = 8
    HF = 80
    def w1pre():
        A(f"s_sub_u32 s{sTMP}, s{sW}, 12")
        A(f"s_lshl_b32 s{sTMP2}, s{sTMP}, 5")
        A(f"v_lshl_add_u32 v{vT0}, v{vRO}, 6, v{vCB}")
        A(f"v_add_u32 v{vT0}, s{sTMP2}, v{vT0}")
        A(f"v_add_u32 v{vT0}, {L_W1}, v{vT0}")
        for s in range(18):
            A(f"ds_read_b64_tr_b16 {vr(W1F+4*s,2)}, v{vT0} offset:{s*2048}")
            A(f"ds_read_b64_tr_b16 {vr(W1F+4*s+2,2)}, v{vT0} offset:{s*2048 + 256}")
            if s % 4 == 3:
                A("s_waitcnt lgkmcnt(0)")
    if not o.get("late_ffn"):
        w1pre()
    A(f"v_mul_u32_u24 v{vT1}, {XSTR}, v{vB8}")
    A(f"v_lshl_add_u32 v{vT1}, v{vKG}, 4, v{vT1}")
    A(f"v_mul_u32_u24 v{vT2}, {H1STR}, v{vB8}")
    A(f"v_lshl_add_u32 v{vT2}, v{vKG}, 3, v{vT2}")
    A(f"s_sub_u32 s{sTMP}, s{sW}, 12")
    A(f"s_lshl_b32 s{sTMP2}, s{sTMP}, 5")
    A(f"v_add_u32 v{vT2}, s{sTMP2}, v{vT2}")
    A("s_waitcnt lgkmcnt(0)")
    if o.get("late_ffn"):
        A("s_waitcnt vmcnt(0)")
        A("s_barrier")
        w1pre()
        A("s_waitcnt lgkmcnt(0)")
    A("s_barrier")
    for s in range(9):
        A(f"ds_read_b128 {vr(HF+4*s,4)}, v{vT1} offset:{L_XN + 64*s}")
    for s in range(18):
        if s < 9:
            A(f"s_waitcnt lgkmcnt(8)")
        else:
            A(f"s_waitcnt lgkmcnt({17-s})")
        c = "0" if s == 0 else vr(vACC, 4)
        A(f"v_mfma_f32_16x16x32_bf16 {vr(vACC,4)}, {vr(W1F+4*s,4)}, {vr(HF+4*(s%9),4)}, {c}")
        if s < 9:
            A(f"ds_read_b128 {vr(HF+4*s,4)}, v{vT1} offset:{L_XN + 64*(s+9)}")
    g.nop(8)
    for r in range(4):
        A(f"v_max_f32 v{vACC+r}, 0, v{vACC+r}")
    A(f"v_cvt_pk_bf16_f32 v8, v{vACC}, v{vACC+1}")
    A(f"v_cvt_pk_bf16_f32 v9, v{vACC+2}, v{vACC+3}")
    A(f"s_mov_b32 s{sC2}, 0x00ff00ff")
    A(f"s_mov_b32 s{sC2+1}, 0x00ff00ff")
    A(f"s_mov_b64 exec, s[{sC2}:{sC2+1}]")
    A(f"ds_write_b64 v{vT2}, v[8:9] offset:{L_H1}")
    A("s_mov_b64 exec, -1")
    A("s_waitcnt lgkmcnt(0)")
    A("s_barrier")
    A("s_branch L_F_done")
    g.lab("L_F_b1")
    A(f"v_mul_u32_u24 v{vT1}, {H1STR}, v{vB8}")
    A(f"v_lshl_add_u32 v{vT1}, v{vKG}, 4, v{vT1}")
    A(f"v_mul_u32_u24 v{vT2}, 2304, v{vM}")
    A(f"v_lshl_add_u32 v{vT2}, v{vKG}, 4, v{vT2}")
    A(f"s_mul_i32 s{sC0}, s{sG}, {8*2304}")
    A(f"s_mul_i32 s{sTMP2}, s{sW}, 192")
    A(f"s_add_u32 s{sC0}, s{sC0}, s{sTMP2}")
    A(f"s_add_u32 s{sC0}, s{sC0}, {WS_QP}")
    A(f"s_mov_b32 s{sC2}, 0x00ff00ff")
    A(f"s_mov_b32 s{sC2+1}, 0x00ff00ff")
    A(f"v_mov_b32 v40, s{sT}")
    A("s_waitcnt lgkmcnt(0)")
    A("s_barrier")
    A("s_barrier")
    A(f"s_cmp_ge_u32 s{sW}, 12")
    A("s_cbranch_scc1 L_F_done")
    A(f"ds_read_b128 v[8:11], v{vT1} offset:{L_H1}")
    A("s_waitcnt lgkmcnt(0)")
    for j in range(3):
        A(f"v_mfma_f32_16x16x32_bf16 {vr(12+4*j,4)}, {vr(W2F+4*j,4)}, v[8:11], 0")
    g.nop(6)
    A(f"s_mov_b64 exec, s[{sC2}:{sC2+1}]")
    for j in range(3):
        for r in range(4):
            A(f"v_and_or_b32 v{12+4*j+r}, v{12+4*j+r}, s{sMK}, v40")
        A(f"buffer_store_dwordx4 {vr(12+4*j,4)}, v{vT2}, {srd(SWS)}, s{sC0} offen offset:{64*j} sc1")
    A("s_mov_b64 exec, -1")
    g.stamp(7)
    g.lab("L_F_done")
    g.lab("L_noFFN")
    A(f"s_cmp_lt_u32 s{sG}, 112")
    A("s_cbranch_scc1 L_fin")
    A(f"s_cmp_ge_u32 s{sW}, 9")
    A("s_cbranch_scc1 L_fin")
    A(f"s_sub_u32 s{sTMP}, s{sG}, 112")
    A(f"s_and_b32 s{sTMP2}, s{sTMP}, 7")
    A(f"s_lshr_b32 s{sTMP}, s{sTMP}, 3")
    A(f"s_mul_i32 s{sTMP2}, s{sTMP2}, 576")
    A(f"s_lshl_b32 s{sTMP}, s{sTMP}, 5")
    A(f"s_add_u32 s{sTMP}, s{sTMP}, s{sTMP2}")
    A(f"s_lshl_b32 s{sBASE}, s{sTMP}, 1")
    A(f"s_lshl_b32 s{sC0}, s{sTMP}, 2")
    A(f"s_add_u32 s{sC0+1}, s{sC0}, {WS_HB}")
    A(f"s_mul_i32 s{sTMP2}, s{sW}, {16*8*2304}")
    A(f"s_add_u32 s{sC0}, s{sC0}, s{sTMP2}")
    A(f"s_add_u32 s{sC0}, s{sC0}, {WS_QP}")
    A(f"s_add_u32 s{sTMP2}, s{sC0}, {8*8*2304}")
    A(f"v_lshrrev_b32 v{vT0}, 3, v{vL}")
    A(f"v_mul_u32_u24 v{vT0}, {8*2304}, v{vT0}")
    A(f"v_lshl_add_u32 v{vT0}, v{vB8}, 4, v{vT0}")
    A(f"v_and_b32 v20, 31, v{vL}")
    A(f"v_lshlrev_b32 v21, 2, v20")
    g.lab("L_pollH2")
    A(f"buffer_load_dword v22, v21, {srd(SWS)}, s{sC0+1} offen sc1")
    A("s_waitcnt vmcnt(0)")
    emit_chk(g, 26, [22], 27)
    emit_poll_end(g, "L_pollH2", 26, sleep=o.get("sleepH2", 2))
    A(f"v_and_b32 v23, 1, v{vKG}")
    A(f"v_lshlrev_b32 v23, 3, v23")
    A(f"v_lshrrev_b32 v24, 1, v{vKG}")
    A(f"v_lshl_add_u32 v23, v24, 2, v23")
    A(f"v_lshl_add_u32 v23, v{vB8}, 4, v23")
    A(f"s_lshl_b32 s{sTMP}, s{sW}, 7")
    A(f"v_add_u32 v23, s{sTMP}, v23")
    g.lab("L_pollQ")
    A(f"buffer_load_dwordx4 {vr(8,4)}, v{vT0}, {srd(SWS)}, s{sC0} offen sc1")
    A(f"buffer_load_dwordx4 {vr(12,4)}, v{vT0}, {srd(SWS)}, s{sTMP2} offen sc1")
    A("s_waitcnt vmcnt(0)")
    emit_chk(g, 26, list(range(8, 16)), 27)
    emit_poll_end(g, "L_pollQ", 26, sleep=o.get("sleepQ", 1))
    g.stamp(6)
    for r in range(8, 16):
        A(f"v_and_b32 v{r}, s{sMK}, v{r}")
    for r in range(4):
        A(f"v_add_f32 v{8+r}, v{8+r}, v{12+r}")
    emit_red4(g, 8, (8,))
    A(f"ds_write_b32 v23, v8 offset:{L_FR}")
    A("s_waitcnt lgkmcnt(0)")
    A("s_barrier")
    A(f"s_cmp_lg_u32 s{sW}, 0")
    A("s_cbranch_scc1 L_fin")
    for j in range(9):
        A(f"ds_read_b32 v{8+j}, v21 offset:{L_FR + 128*j}")
    A(f"v_and_b32 v22, s{sHI}, v22")
    A(f"v_lshlrev_b32 v20, 1, v20")
    A("s_waitcnt lgkmcnt(0)")
    A("v_add_f32 v8, v8, v9")
    A("v_add_f32 v10, v10, v11")
    A("v_add_f32 v12, v12, v13")
    A("v_add_f32 v14, v14, v15")
    A("v_add_f32 v8, v8, v10")
    A("v_add_f32 v12, v12, v14")
    A("v_add_f32 v8, v8, v16")
    A("v_add_f32 v8, v8, v12")
    emit_bf16r(g, 8, 8)
    A("v_add_f32 v8, v8, v22")
    A("v_cvt_pk_bf16_f32 v8, v8, v8")
    A("s_mov_b32 exec_hi, 0")
    A(f"buffer_store_short v8, v20, {srd(SOUT)}, s{sBASE} offen")
    A("s_mov_b64 exec, -1")
    A(f"s_cmp_lg_u32 s{sG}, 112")
    A("s_cbranch_scc1 L_fin0")
    A(f"s_add_u32 s{sTMP}, s{sEP}, 1")
    A(f"v_mov_b32 v9, s{sTMP}")
    A("v_mov_b32 v10, 0")
    A("s_mov_b64 exec, 1")
    A(f"buffer_store_dword v9, v10, {srd(SWS)}, 0 offen offset:{WS_EPOCH} sc1")
    A("s_mov_b64 exec, -1")
    g.lab("L_fin0")
    g.stamp(7)
    g.lab("L_fin")
    if stamps:
        A(f"s_lshl_b32 s{sTMP}, s{sG}, 4")
        A(f"s_add_u32 s{sTMP}, s{sTMP}, s{sW}")
        A(f"s_lshl_b32 s{sTMP}, s{sTMP}, 6")
        A(f"s_add_u32 s{sTMP}, s{sTMP}, {WS_STAMP}")
        A("v_mov_b32 v1, 0")
        for q in range(4):
            for r in range(4):
                A(f"v_mov_b32 v{8+4*q+r}, s{80+4*q+r}")
            A(f"buffer_store_dwordx4 {vr(8+4*q,4)}, v1, {srd(SWS)}, s{sTMP} offen offset:{16*q}")
    g.lab("L_end")
    A("s_endpgm")
    g.L.append('.section .rodata,"a"')
    g.L.append(".p2align 6")
    g.L.append(f".amdhsa_kernel {KN}_kernel")
    g.L.append("  .amdhsa_next_free_vgpr 128")
    g.L.append("  .amdhsa_next_free_sgpr 102")
    g.L.append("  .amdhsa_accum_offset 128")
    g.L.append("  .amdhsa_group_segment_fixed_size 0")
    g.L.append("  .amdhsa_kernarg_size 88")
    g.L.append("  .amdhsa_user_sgpr_count 2")
    g.L.append("  .amdhsa_user_sgpr_kernarg_segment_ptr 1")
    g.L.append("  .amdhsa_system_sgpr_workgroup_id_x 1")
    g.L.append("  .amdhsa_float_denorm_mode_32 3")
    g.L.append(".end_amdhsa_kernel")
    open(fname, "w").write("\n".join(g.L) + "\n")

if __name__ == "__main__":
    gen("k0.s", stamps=False)
    gen("k0s.s", stamps=True)
```
